```python
import torch

def _softmax(x, axis=-1):
    return torch.softmax(x, dim=axis)
def _gelu(x):
    return torch.nn.functional.gelu(x, approximate="tanh")
def _silu(x):
    return torch.nn.functional.silu(x)
def _sigmoid(x):
    return torch.sigmoid(x)
def _layernorm(x, axis=-1, eps=1e-5):
    m = x.mean(dim=axis, keepdim=True)
    v = x.var(dim=axis, keepdim=True, unbiased=False)
    return (x - m) / torch.sqrt(v + eps)
def _scatter_add(tgt, idx, src, axis=0):
    return tgt.clone().index_add_(axis, idx, src)
def _segment_sum(src, seg, n):
    out = torch.zeros((n,) + src.shape[1:], dtype=src.dtype)
    return out.index_add_(0, seg, src)
def _pad(x, pw):
    flat = tuple(v for pair in reversed(pw) for v in pair)
    return torch.nn.functional.pad(x, flat)

kernel_name = 'parallel_sum__spectral_fnet__geglu_ffn__prompt'

def setup_inputs():

    _w = (lambda a: (lambda t: t.to(torch.bfloat16) if t.is_floating_point() else t)(torch.as_tensor(a)))
    def _A_setup():
        B, S, D = 1, 2048, 512
        ns = torch.arange(S)[:, None] * torch.arange(S)[None, :]
        nd = torch.arange(D)[:, None] * torch.arange(D)[None, :]
        Ws_re = torch.cos(-2.0 * torch.pi * ns / S).to(float)
        Ws_im = torch.sin(-2.0 * torch.pi * ns / S).to(float)
        Wd_re = torch.cos(-2.0 * torch.pi * nd / D).to(float)
        Wd_im = torch.sin(-2.0 * torch.pi * nd / D).to(float)
        return {
            "x": _w((lambda *s: torch.randn(*s, dtype=torch.bfloat16) * 0.05)(B, S, D)),
            "dft_seq_re": _w(Ws_re),
            "dft_seq_im": _w(Ws_im),
            "dft_hid_re": _w(Wd_re),
            "dft_hid_im": _w(Wd_im),
        }
    _A_in = _A_setup()

    def _B_setup():
        B, S, D, F = 1, 2048, 512, 1792
        return {
            "x": _w((lambda *s: torch.randn(*s, dtype=torch.bfloat16) * 0.05)(B, S, D)),
            "w_gate": _w((lambda *s: torch.randn(*s, dtype=torch.bfloat16) * 0.2)(D, F)),
            "w_up": _w((lambda *s: torch.randn(*s, dtype=torch.bfloat16) * 0.2)(D, F)),
            "w_down": _w((lambda *s: torch.randn(*s, dtype=torch.bfloat16) * 0.2)(F, D)),
        }
    _B_in = _B_setup()

    return {
        "A_x": _A_in["x"],
        "A_dft_seq_re": _A_in["dft_seq_re"],
        "A_dft_seq_im": _A_in["dft_seq_im"],
        "A_dft_hid_re": _A_in["dft_hid_re"],
        "A_dft_hid_im": _A_in["dft_hid_im"],
        "B_x": _B_in["x"],
        "B_w_gate": _B_in["w_gate"],
        "B_w_up": _B_in["w_up"],
        "B_w_down": _B_in["w_down"],
    }

def reference(A_x, A_dft_seq_re, A_dft_seq_im, A_dft_hid_re, A_dft_hid_im, B_x, B_w_gate, B_w_up, B_w_down):
    def _A_ref(x, dft_seq_re, dft_seq_im, dft_hid_re, dft_hid_im):
        a = torch.einsum("bsd,ed->bse", x, dft_hid_re)
        b = torch.einsum("bsd,ed->bse", x, dft_hid_im)
        y = torch.einsum("ts,bse->bte", dft_seq_re, a) - torch.einsum("ts,bse->bte", dft_seq_im, b)
        return y

    def _B_ref(x, w_gate, w_up, w_down):
        return (_gelu(x @ w_gate) * (x @ w_up)) @ w_down

    x = A_x
    xn = _layernorm(x, axis=-1)
    return x + _A_ref(xn, A_dft_seq_re, A_dft_seq_im, A_dft_hid_re, A_dft_hid_im) + _B_ref(xn, B_w_gate, B_w_up, B_w_down)
```

```python
import re


def regs(kind, base, n=1):
    return [(kind, base + k) for k in range(n)]


class R:
    __slots__ = ("k", "b", "n")

    def __init__(self, k, b, n=1):
        self.k, self.b, self.n = k, b, n

    def __str__(self):
        if self.n == 1:
            return f"{self.k}{self.b}"
        return f"{self.k}[{self.b}:{self.b + self.n - 1}]"

    def set(self):
        return [(self.k, self.b + i) for i in range(self.n)]

    def __getitem__(self, i):
        if isinstance(i, slice):
            st = i.start or 0
            return R(self.k, self.b + st, i.stop - st)
        assert 0 <= i < self.n
        return R(self.k, self.b + i, 1)


def V(b, n=1):
    return R("v", b, n)


def A(b, n=1):
    return R("a", b, n)


def S(b, n=1):
    return R("s", b, n)


SPECIAL = {"vcc": [("x", "vcc")], "exec": [("x", "exec")], "m0": [("x", "m0")], "scc": [("x", "scc")]}


def opset(o):
    if isinstance(o, R):
        return o.set()
    if isinstance(o, str):
        t = o.lstrip("-")
        if t in SPECIAL:
            return SPECIAL[t]
        m = re.fullmatch(r"-?(?:abs\()?([vas])(\d+)\)?", o)
        if m:
            return [(m.group(1), int(m.group(2)))]
    return []


def fmt(o):
    if isinstance(o, float):
        import struct
        return hex(struct.unpack("<I", struct.pack("<f", o))[0])
    if isinstance(o, int):
        return str(o) if -16 <= o <= 64 else hex(o & 0xFFFFFFFF)
    return str(o)


TRANS = ("v_exp_f32", "v_log_f32", "v_rcp_f32", "v_rsq_f32", "v_sqrt_f32", "v_sin_f32", "v_cos_f32")


class Ins:
    __slots__ = ("text", "kind", "rd", "wr", "tok", "wait", "meta", "comment")

    def __init__(self, text, kind, rd=(), wr=(), tok=None, wait=None, meta=None):
        self.text, self.kind = text, kind
        self.rd, self.wr = set(rd), set(wr)
        self.tok = tok
        self.wait = wait
        self.meta = meta or {}
        self.comment = None

    def __repr__(self):
        return self.text


class Tok:
    __slots__ = ("name", "seq")

    def __init__(self, name=""):
        self.name, self.seq = name, None


def valu(op, dst, *srcs, mods="", rmw=False):
    rd = []
    for s_ in srcs:
        rd += opset(s_)
    wr = opset(dst)
    if rmw:
        rd += wr
    kind = "trans" if op in TRANS else "valu"
    meta = {}
    if op.startswith("v_dot"):
        meta["dot"] = op
    text = f"{op} {fmt(dst)}, " + ", ".join(fmt(s_) for s_ in srcs) + (" " + mods if mods else "")
    return Ins(text, kind, rd, wr, meta=meta)


def vcmp(op, dst, a, b):
    return Ins(f"{op} {fmt(dst)}, {fmt(a)}, {fmt(b)}", "valu", opset(a) + opset(b), opset(dst))


def permswap(a, b):
    return Ins(f"v_permlane32_swap_b32 {a}, {b}", "valu", a.set() + b.set(), a.set() + b.set(), meta={"perm": 1})


def readfirstlane(sd, v):
    return Ins(f"v_readfirstlane_b32 {sd}, {v}", "valu", v.set(), sd.set(), meta={"rfl": 1})


def salu(op, dst, *srcs, scc=True):
    rd = []
    for s_ in srcs:
        rd += opset(s_)
    wr = opset(dst) if dst is not None else []
    if op.startswith("s_cselect") or op.startswith("s_addc"):
        rd += SPECIAL["scc"]
    if scc and not op.startswith("s_mov") and not op.startswith("s_cselect"):
        wr = wr + SPECIAL["scc"]
    ops = ([fmt(dst)] if dst is not None else []) + [fmt(s_) for s_ in srcs]
    return Ins(f"{op} " + ", ".join(ops), "salu", rd, wr)


def mfma(d, a, b, c):
    rd = a.set() + b.set() + (c.set() if isinstance(c, R) else [])
    return Ins(f"v_mfma_f32_32x32x16_bf16 {d}, {a}, {b}, {fmt(c)}", "mfma", rd, d.set(),
               meta={"a": set(a.set()), "b": set(b.set()), "c": set(c.set()) if isinstance(c, R) else set(), "d": set(d.set())})


def ds_read(op, dst, addr, off=0, tok=None):
    assert 0 <= off < 65536, off
    return Ins(f"{op} {dst}, {addr}" + (f" offset:{off}" if off else ""), "ds", addr.set(), dst.set(), tok=tok or Tok(), meta={"load": 1})


def ds_write(op, addr, data, off=0, tok=None):
    assert 0 <= off < 65536, off
    return Ins(f"{op} {addr}, {data}" + (f" offset:{off}" if off else ""), "ds", addr.set() + data.set(), [], tok=tok or Tok())


def dma(voff, srd, soff, off=0, flags="", tok=None):
    assert 0 <= off < 4096
    t = f"buffer_load_dwordx4 {voff}, {srd}, {fmt(soff)} offen" + (f" offset:{off}" if off else "") + (" " + flags if flags else "") + " lds"
    return Ins(t, "vmem", voff.set() + srd.set() + opset(soff) + SPECIAL["m0"], [], tok=tok or Tok(), meta={"dma": 1})


def bload(dst, voff, srd, soff, off=0, flags="", tok=None):
    op = {1: "buffer_load_dword", 2: "buffer_load_dwordx2", 4: "buffer_load_dwordx4"}[dst.n]
    assert 0 <= off < 4096
    t = f"{op} {dst}, {voff}, {srd}, {fmt(soff)} offen" + (f" offset:{off}" if off else "") + (" " + flags if flags else "")
    return Ins(t, "vmem", voff.set() + srd.set() + opset(soff), dst.set(), tok=tok or Tok(), meta={"load": 1})


def bstore(data, voff, srd, soff, off=0, flags="", tok=None):
    op = {1: "buffer_store_dword", 2: "buffer_store_dwordx2", 4: "buffer_store_dwordx4"}[data.n]
    assert 0 <= off < 4096
    t = f"{op} {data}, {voff}, {srd}, {fmt(soff)} offen" + (f" offset:{off}" if off else "") + (" " + flags if flags else "")
    return Ins(t, "vmem", voff.set() + srd.set() + opset(soff) + data.set(), [], tok=tok or Tok(),
               meta={"store": set(data.set()) if data.n >= 3 else set()})


def gload(dst, voff, sbase, off=0, flags="", tok=None):
    op = {1: "global_load_dword", 2: "global_load_dwordx2", 4: "global_load_dwordx4"}[dst.n]
    t = f"{op} {dst}, {voff}, {sbase}" + (f" offset:{off}" if off else "") + (" " + flags if flags else "")
    return Ins(t, "vmem", voff.set() + sbase.set(), dst.set(), tok=tok or Tok(), meta={"load": 1})


def wait(vm=None, lgkm=None):
    return Ins("s_waitcnt ?", "wait", wait={"vm": vm, "lgkm": lgkm})


def barrier():
    return Ins("s_barrier", "barrier")


def nop(n=0):
    return Ins(f"s_nop {n}", "nop", meta={"n": n + 1})


def label(name):
    return Ins(f"{name}:", "label")


def raw(text, kind="salu", rd=(), wr=()):
    r, w = [], []
    for o in rd:
        r += opset(o)
    for o in wr:
        w += opset(o)
    return Ins(text, kind, r, w)


def branch(op, target):
    rd = []
    if "scc" in op:
        rd = SPECIAL["scc"]
    if "vcc" in op:
        rd = SPECIAL["vcc"]
    return Ins(f"{op} {target}", "branch", rd, [])


def comment(t):
    i = Ins(f"; {t}", "comment")
    return i


def resolve_waits(prog):
    out = []
    vm_n = 0
    vm_done = 0
    lg_n = 0
    lg_done = 0
    pend = {}
    smem_pending = False

    def emit_wait(vm_need, lg_need):
        nonlocal vm_done, lg_done
        parts = []
        if vm_need is not None and vm_need > vm_done:
            c = min(vm_n - vm_need, 63)
            parts.append(f"vmcnt({c})")
            vm_done = vm_n - c
        if lg_need is not None and lg_need > lg_done:
            c = min(lg_n - lg_need, 15)
            parts.append(f"lgkmcnt({c})")
            lg_done = lg_n - c
        if parts:
            out.append(Ins("s_waitcnt " + " ".join(parts), "wait"))

    for ins in prog:
        if ins.kind == "wait" and ins.wait is not None:
            w = ins.wait
            vm_need = lg_need = None
            if w["vm"] is not None:
                if isinstance(w["vm"], Tok):
                    assert w["vm"].seq is not None, f"wait on unissued token {w['vm'].name}"
                    vm_need = w["vm"].seq + 1
                else:
                    vm_need = vm_n - w["vm"]
            if w["lgkm"] is not None:
                if isinstance(w["lgkm"], Tok):
                    assert w["lgkm"].seq is not None, f"wait on unissued token {w['lgkm'].name}"
                    lg_need = w["lgkm"].seq + 1
                else:
                    lg_need = lg_n - w["lgkm"]
                    if w["lgkm"] == 0 and smem_pending:
                        out.append(Ins("s_waitcnt lgkmcnt(0)", "wait"))
                        smem_pending = False
                        lg_done = lg_n
                        for r_ in [r_ for r_, v_ in pend.items() if v_[0] == "sm"]:
                            del pend[r_]
            emit_wait(vm_need, lg_need)
            continue
        vm_need = lg_need = None
        for r_ in ins.rd | ins.wr:
            p = pend.get(r_)
            if p:
                if p[0] == "vm":
                    vm_need = max(vm_need or 0, p[1] + 1)
                elif p[0] == "lg":
                    lg_need = max(lg_need or 0, p[1] + 1)
                else:
                    raise RuntimeError(f"SMEM result {r_} used without explicit wait: {ins.text}")
        emit_wait(vm_need, lg_need)
        for r_ in list(pend):
            p = pend[r_]
            if (p[0] == "vm" and p[1] < vm_done) or (p[0] == "lg" and p[1] < lg_done):
                del pend[r_]
        if ins.kind == "vmem":
            ins.tok.seq = vm_n
            if ins.meta.get("load"):
                for r_ in ins.wr:
                    pend[r_] = ("vm", vm_n)
            vm_n += 1
            assert vm_n - vm_done <= 63, f"too many vmem outstanding at {ins.text}"
        elif ins.kind == "ds":
            assert not smem_pending, "DS op while SMEM outstanding"
            ins.tok.seq = lg_n
            if ins.meta.get("load"):
                for r_ in ins.wr:
                    pend[r_] = ("lg", lg_n)
            lg_n += 1
        elif ins.kind == "smem":
            smem_pending = True
            for r_ in ins.wr:
                pend[r_] = ("sm", 0)
        elif ins.kind == "drain":
            continue
        out.append(ins)
    return out


def pad_hazards(prog):
    out = []
    pos = 0
    hist = []

    def need(ins):
        req = 0
        isv = ins.kind in ("valu", "trans")
        for p, h in reversed(hist):
            d = pos - p - 1
            if d >= 20:
                break
            n = 0
            hv = h.kind in ("valu", "trans")
            if hv:
                vw = {r_ for r_ in h.wr if r_[0] in "va"}
                sw = {r_ for r_ in h.wr if r_[0] == "s" or r_ == ("x", "vcc")}
                if ins.kind == "mfma" and (vw & ins.rd):
                    n = max(n, 2)
                if ins.meta.get("perm") and (vw & ins.rd):
                    n = max(n, 2)
                if ins.meta.get("rfl") and (vw & ins.rd):
                    n = max(n, 1)
                if h.kind == "trans" and isv and ins.kind != "trans" and (vw & ins.rd):
                    n = max(n, 1)
                if h.kind == "trans" and ins.kind in ("trans",) and (vw & ins.rd):
                    n = max(n, 1)
                if sw & ins.rd:
                    if ins.kind == "vmem":
                        n = max(n, 5)
                    elif isv:
                        n = max(n, 2)
                    elif ins.kind in ("salu", "branch"):
                        n = max(n, 1)
                if h.meta.get("dot") and (vw & (ins.rd | ins.wr)) and ins.meta.get("dot") != h.meta.get("dot"):
                    n = max(n, 3)
                if h.meta.get("dot") and ins.meta.get("dot") == h.meta.get("dot") and (vw & ins.rd) and not (vw & ins.wr):
                    n = max(n, 3)
            if h.kind == "mfma":
                D = h.meta["d"]
                if ins.kind == "mfma":
                    if D & (ins.meta["a"] | ins.meta["b"]):
                        n = max(n, 12)
                    if D & ins.meta["c"] and ins.meta["c"] != D:
                        n = max(n, 10)
                    if D & ins.meta["d"] and ins.meta["c"] != D:
                        n = max(n, 12)
                elif isv or ins.kind in ("vmem", "ds"):
                    if D & (ins.rd | ins.wr):
                        n = max(n, 12)
                if isv and (h.meta["c"] & ins.wr):
                    n = max(n, 7)
            if h.kind == "salu" and ("x", "m0") in h.wr and ins.meta.get("dma"):
                n = max(n, 1)
            if h.kind == "vmem" and h.meta.get("store") and (h.meta["store"] & ins.wr):
                n = max(n, 2)
            if n - d > req:
                req = n - d
        return req

    for ins in prog:
        if ins.kind in ("comment", "label"):
            out.append(ins)
            continue
        r_ = need(ins)
        while r_ > 0:
            k = min(r_, 16)
            out.append(nop(k - 1))
            pos += k
            r_ -= k
        out.append(ins)
        if ins.kind == "nop":
            pos += ins.meta["n"]
        else:
            hist.append((pos, ins))
            pos += 1
            if len(hist) > 40:
                hist.pop(0)
    return out


def render(prog):
    L = []
    for i in prog:
        if i.kind == "label":
            L.append(i.text)
        else:
            L.append("  " + i.text)
    return "\n".join(L)
```

```python
import sys, math, argparse
from asmlib import *

NAME = "parallel_sum__spectral_fnet__geglu_ffn__prompt_kernel"

WS_AB = 0
WS_H = 4 << 20
WS_PART = 12 << 20
WS_FLAG = 20 << 20
WS_SIZE = 21 << 20
SLOT = 32768
UP_OFF = 14464

sW, sI, sJ, sQ, sTJ = S(3), S(4), S(5), S(6), S(7)
sT = [S(8 + k) for k in range(8)]
P_X, P_SRE, P_SIM, P_HRE, P_HIM, P_BX, P_G, P_U = [S(16 + 2 * k, 2) for k in range(8)]
P_DN, P_OUT, P_DBG, P_WS = [S(32 + 2 * k, 2) for k in range(4)]
SX, SWD, SGU, SWS, SDN, SWK, SOUT, SDBG = [S(40 + 4 * k, 4) for k in range(8)]
sW4096, sW2048, sW32K = S(72), S(73), S(74)
sXo, sWDo, sGUo, sABo, sWSo, sDNo, sHo = [S(75 + k) for k in range(7)]
sGUm = S(82)
sSign = S(83)
sABst, sHst, sPst = S(84), S(85), S(86)
sCnt = S(87)
sPC = S(88, 2)
sPld = [S(90), S(91), S(92)]
sOo = S(93)
sK1 = S(94)
NSGPR = 96

vLane = V(0)
V16L = V(1)
VP = [V(2 + k) for k in range(4)]
VG = [V(6 + k) for k in range(7)]
VQ = [V(13 + k) for k in range(4)]
PK = [V(17 + k) for k in range(4)]
PK2 = [V(21 + k) for k in range(4)]
TR2 = [V(25 + k) for k in range(3)]
vN = V(28, 2)
vF = V(30, 2)
vFa = [V(32), V(33), V(34)]
vFs = V(35)
vT = [V(36 + k) for k in range(12)]
ACC2V = [V(48 + 16 * g, 16) for g in range(5)]
XF = [V(128 + 4 * k, 4) for k in range(32)]
ACC3 = [[V(128, 16), V(144, 16)], [V(160, 16), V(176, 16)]]
A3 = [V(192 + k) for k in range(3)]
B3 = [[V(195 + 4 * b + k) for k in range(4)] for b in range(3)]
TR4 = [V(207 + k) for k in range(3)]
B4 = [V(210 + k) for k in range(3)]
vS = V(216, 16)
vPL = [V(232, 4), V(236, 4), V(240, 4), V(244, 4), V(248, 4), V(252, 4)]
ACC1 = [A(0, 16), A(16, 16)]
ACC2A = [A(32, 16), A(48, 16)]
ACC2 = ACC2V + ACC2A
FR0 = 64
NFR = 16


def slot_of(n):
    return 4 if n == 0 else (n - 1) % 5


class Spine:
    def __init__(self):
        self.slots = []
        self.step_first = {}
        self.ring_next = 0
        self.ring_last_use = {}

    def add(self, step, m):
        if step not in self.step_first:
            self.step_first[step] = len(self.slots)
        self.slots.append(dict(pre=[], m=m, pr=[], pd=[], pv=[], step=step))
        return len(self.slots) - 1

    def frag(self):
        k = self.ring_next % NFR
        self.ring_next += 1
        return k, A(FR0 + 4 * k, 4)

    def place(self, stream, start, rate, key="pv", end=None):
        acc = 0.0
        s = start
        i = 0
        while i < len(stream):
            acc += rate
            while acc >= 1.0 and i < len(stream):
                self.slots[s][key].append(stream[i])
                i += 1
                acc -= 1.0
            s += 1
            if s >= len(self.slots) or (end is not None and s >= end):
                s = min(s, len(self.slots)) - 1
                for x in stream[i:]:
                    self.slots[s][key].append(x)
                return s
        return s

    def flatten(self):
        out = []
        for k, s in enumerate(self.slots):
            out += s["pre"]
            out.append(s["m"])
            out += s["pr"] + s["pd"] + s["pv"]
        return out


def build(opt):
    P = []
    E = P.append
    slow = []

    E(raw("s_cmp_ge_u32 s2, 0x100", rd=["s2"], wr=["scc"]))
    E(branch("s_cbranch_scc1", "L_end"))
    E(Ins("s_load_dwordx16 s[16:31], s[0:1], 0", "smem", regs("s", 0, 2), regs("s", 16, 16)))
    E(Ins("s_load_dwordx8 s[32:39], s[0:1], 64", "smem", regs("s", 0, 2), regs("s", 32, 8)))
    E(Ins("s_memrealtime s[14:15]", "smem", [], regs("s", 14, 2)))
    E(valu("v_lshrrev_b32", vT[0], 6, V(0)))
    E(valu("v_and_b32", vLane, 63, V(0)))
    E(readfirstlane(sW, vT[0]))
    E(salu("s_and_b32", sT[0], S(2), 7))
    E(salu("s_lshr_b32", sT[1], S(2), 3))
    E(salu("s_and_b32", sT[2], sT[0], 1))
    E(salu("s_lshl_b32", sT[2], sT[2], 3))
    E(salu("s_and_b32", sT[3], sT[1], 7))
    E(salu("s_add_u32", sI, sT[2], sT[3]))
    E(salu("s_lshr_b32", sQ, sT[0], 1))
    E(salu("s_lshr_b32", sTJ, sT[1], 3))
    E(salu("s_lshl_b32", sJ, sQ, 2))
    E(salu("s_add_u32", sJ, sJ, sTJ))
    E(salu("s_lshl_b32", sW4096, sW, 12))
    E(salu("s_lshl_b32", sW2048, sW, 11))
    E(salu("s_lshl_b32", sW32K, sW, 15))
    E(valu("v_lshlrev_b32", V16L, 4, vLane))
    l8, l7, l16 = vT[0], vT[1], vT[2]
    E(valu("v_lshrrev_b32", l8, 3, vLane))
    E(valu("v_and_b32", l7, 7, vLane))
    E(valu("v_lshrrev_b32", l16, 4, vLane))
    E(valu("v_xor_b32", vT[3], l7, l16))
    E(valu("v_xor_b32", vT[4], 4, vT[3]))
    E(valu("v_lshlrev_b32", vT[3], 4, vT[3]))
    E(valu("v_lshlrev_b32", vT[4], 4, vT[4]))
    E(valu("v_lshlrev_b32", vT[5], 10, l8))
    for rg in range(4):
        E(valu("v_add_u32", VP[rg], vT[5], vT[3 + (rg & 1)]))
        if rg:
            E(valu("v_add_u32", VP[rg], 7168 * rg, VP[rg]))
    E(salu("s_lshl_b32", sXo, sI, 17))
    E(salu("s_add_u32", sXo, sXo, sW32K))
    E(wait(lgkm=0))

    def mksrd(srd, ptr, size):
        E(salu("s_mov_b32", srd[0], ptr[0]))
        E(salu("s_and_b32", srd[1], ptr[1], 0xFFFF))
        E(salu("s_mov_b32", srd[2], size))
        E(salu("s_mov_b32", srd[3], 0x20000))

    def mksrd_sel(srd, pa, pb, size):
        E(salu("s_cselect_b32", srd[0], pb[0], pa[0]))
        E(salu("s_cselect_b32", srd[1], pb[1], pa[1]))
        E(salu("s_and_b32", srd[1], srd[1], 0xFFFF))
        E(salu("s_mov_b32", srd[2], size))
        E(salu("s_mov_b32", srd[3], 0x20000))

    mksrd(SX, P_X, 2048 * 1024)
    xtok = []
    for s in range(8):
        E(salu("s_add_u32", "m0", sW32K, 4096 * s))
        if s:
            E(salu("s_add_u32", sXo, sXo, 128))
        else:
            E(nop(0))
        for rg in range(4):
            t = Tok(f"x{s}.{rg}")
            E(dma(VP[rg], SX, sXo, 1024 * rg, tok=t))
        xtok.append(t)
    E(raw("s_cmp_ge_u32 s5, 8", rd=[sJ], wr=["scc"]))
    mksrd_sel(SWD, P_HRE, P_HIM, 512 * 1024)
    E(raw("s_cmp_ge_u32 s5, 8", rd=[sJ], wr=["scc"]))
    E(salu("s_cselect_b32", sSign, 0x80008000, 0))
    E(salu("s_and_b32", sT[0], sJ, 7))
    E(salu("s_lshl_b32", sWDo, sT[0], 16))
    E(salu("s_lshl_b32", sT[1], sW, 14))
    E(salu("s_add_u32", sWDo, sWDo, sT[1]))

    Ltok = {}

    def load_wd(n):
        I = []
        sl = slot_of(n) * SLOT
        for s in range(4):
            I.append(salu("s_add_u32", "m0", sW2048, sl + 8192 * s))
            if n or s:
                I.append(salu("s_add_u32", sWDo, sWDo, 128))
            for h in range(2):
                t = Tok(f"L{n}.{s}.{h}")
                Ltok.setdefault(n, []).append(t)
                I.append(dma(VP[h], SWD, sWDo, 1024 * h, tok=t))
        return I

    P += load_wd(0)
    E(raw("s_cmp_ge_u32 s3, 2", rd=[sW], wr=["scc"]))
    mksrd_sel(SGU, P_G, P_U, 512 * 3584)
    E(raw("s_cmp_ge_u32 s6, 2", rd=[sQ], wr=["scc"]))
    mksrd_sel(SWS, P_SRE, P_SIM, 2048 * 4096)
    mksrd(SDN, P_DN, 1792 * 1024)
    mksrd(SWK, P_WS, WS_SIZE)
    mksrd(SOUT, P_OUT, 2048 * 1024)
    mksrd(SDBG, P_DBG, 256)
    E(salu("s_or_b32", sT[0], S(2), sW))
    E(salu("s_or_b32", sT[6], sT[6], 1))
    E(valu("v_or_b32", vT[8], sT[0], vLane))
    E(valu("v_mov_b32", vT[6], sT[6]))
    E(valu("v_mov_b32", vT[7], sT[7]))
    E(valu("v_lshlrev_b32", vT[8], 8, vT[8]))
    E(bstore(V(vT[6].b, 2), vT[8], SDBG, 0, flags="sc1"))
    cc_base = vT[6]
    E(salu("s_and_b32", sT[0], sW, 1))
    E(salu("s_mul_i32", sT[0], sT[0], 448))
    for cc in range(7):
        u, row = vT[7], vT[8]
        E(valu("v_add_u32", u, sT[0], vLane))
        if cc:
            E(valu("v_add_u32", u, 64 * cc, u))
        E(valu("v_mul_u32_u24", row, 4682, u))
        E(valu("v_lshrrev_b32", row, 16, row))
        E(valu("v_mul_u32_u24", vT[9], 14, row))
        E(valu("v_sub_u32", vT[9], u, vT[9]))
        E(valu("v_lshlrev_b32", vT[9], 4, vT[9]))
        E(valu("v_mul_u32_u24", row, 3584, row))
        E(valu("v_add_u32", VG[cc], row, vT[9]))
        if cc % 4:
            E(valu("v_subrev_u32", VG[cc], 1024 * (cc % 4), VG[cc]))
    E(salu("s_mul_i32", sGUo, sJ, 224))
    E(salu("s_and_b32", sT[0], sW, 1))
    E(salu("s_mul_i32", sT[0], sT[0], 7168))
    E(raw("s_cmp_ge_u32 s3, 2", rd=[sW], wr=["scc"]))
    E(salu("s_cselect_b32", sGUm, UP_OFF, 0))
    E(salu("s_add_u32", sGUm, sGUm, sT[0]))
    row, hh, f = vT[7], vT[8], vT[9]
    E(valu("v_and_b32", row, 31, vLane))
    E(valu("v_lshrrev_b32", hh, 5, vLane))
    E(valu("v_bfe_u32", f, vLane, 1, 3))
    E(valu("v_xor_b32", f, f, hh))
    E(valu("v_lshlrev_b32", row, 7, row))
    for kk in range(4):
        E(valu("v_xor_b32", vT[10], 2 * kk, f))
        E(valu("v_lshl_add_u32", PK[kk], vT[10], 4, row))
        E(valu("v_add_u32", PK2[kk], sW32K, PK[kk]))
    E(valu("v_bfe_u32", vT[10], vLane, 4, 1))
    E(valu("v_mul_u32_u24", TR2[0], UP_OFF, vT[10]))
    E(valu("v_bfe_u32", vT[10], vLane, 2, 2))
    E(valu("v_lshl_add_u32", vT[10], hh, 3, vT[10]))
    E(valu("v_mul_u32_u24", vT[10], 224, vT[10]))
    E(valu("v_add_u32", TR2[0], TR2[0], vT[10]))
    E(valu("v_and_b32", vT[10], 3, vLane))
    E(valu("v_lshl_add_u32", TR2[0], vT[10], 3, TR2[0]))
    E(valu("v_add_u32", TR2[1], 65536, TR2[0]))
    E(valu("v_add_u32", TR2[2], 131072, TR2[0]))
    E(valu("v_lshlrev_b32", vT[5], 12, l8))
    for rg in range(4):
        E(valu("v_add_u32", VQ[rg], vT[5], vT[3 + (rg & 1)]))
        if rg:
            E(valu("v_add_u32", VQ[rg], (32768 - 1024) * rg, VQ[rg]))
    E(salu("s_and_b32", sT[0], sQ, 1))
    E(salu("s_lshr_b32", sT[1], sQ, 1))
    E(salu("s_lshl_b32", sT[2], sT[0], 1))
    E(salu("s_xor_b32", sT[2], sT[2], sW))
    E(salu("s_lshl_b32", sT[3], sT[1], 4))
    E(salu("s_add_u32", sT[2], sT[2], sT[3]))
    E(salu("s_lshl_b32", sT[3], sTJ, 2))
    E(salu("s_add_u32", sT[2], sT[2], sT[3]))
    E(salu("s_lshl_b32", sABo, sT[2], 17))
    E(salu("s_lshl_b32", sT[3], sT[0], 16))
    E(salu("s_add_u32", sABo, sABo, sT[3]))
    if WS_AB:
        E(salu("s_add_u32", sABo, sABo, WS_AB))
    E(salu("s_lshl_b32", sT[2], sT[1], 1))
    E(salu("s_xor_b32", sT[2], sT[2], sW))
    E(salu("s_lshl_b32", sT[3], sI, 2))
    E(salu("s_add_u32", sT[2], sT[2], sT[3]))
    E(salu("s_lshl_b32", sWSo, sT[2], 17))
    E(salu("s_lshl_b32", sT[3], sT[0], 11))
    E(salu("s_add_u32", sWSo, sWSo, sT[3]))
    E(salu("s_lshl_b32", sDNo, sTJ, 8))
    E(salu("s_lshl_b32", sT[3], sT[0], 7))
    E(salu("s_add_u32", sDNo, sDNo, sT[3]))
    E(salu("s_add_u32", sDNo, sDNo, sW32K))
    E(salu("s_lshl_b32", sT[2], sI, 2))
    E(salu("s_lshl_b32", sT[3], sT[1], 1))
    E(salu("s_add_u32", sT[2], sT[2], sT[3]))
    E(salu("s_lshr_b32", sT[3], sW, 1))
    E(salu("s_add_u32", sT[2], sT[2], sT[3]))
    E(salu("s_mul_i32", sHo, sT[2], 112 * 1024))
    E(salu("s_and_b32", sT[3], sW, 1))
    E(salu("s_lshl_b32", sT[3], sT[3], 12))
    E(salu("s_add_u32", sHo, sHo, sT[3]))
    E(salu("s_add_u32", sHo, sHo, WS_H))
    E(salu("s_lshl_b32", sABst, sJ, 18))
    E(salu("s_lshl_b32", sT[3], sI, 13))
    E(salu("s_add_u32", sABst, sABst, sT[3]))
    E(salu("s_add_u32", sABst, sABst, sW2048))
    if WS_AB:
        E(salu("s_add_u32", sABst, sABst, WS_AB))
    E(salu("s_lshl_b32", sT[2], sI, 2))
    E(salu("s_add_u32", sT[2], sT[2], sW))
    E(salu("s_mul_i32", sHst, sT[2], 112 * 1024))
    E(salu("s_mul_i32", sT[3], sJ, 7168))
    E(salu("s_add_u32", sHst, sHst, sT[3]))
    E(salu("s_add_u32", sHst, sHst, WS_H))
    E(salu("s_lshl_b32", sT[2], sI, 2))
    E(salu("s_add_u32", sT[2], sT[2], sTJ))
    E(salu("s_lshl_b32", sT[2], sT[2], 17))
    E(salu("s_add_u32", sT[2], sT[2], sW2048))
    E(salu("s_add_u32", sT[2], sT[2], WS_PART))
    E(salu("s_lshl_b32", sT[3], sQ, 15))
    E(salu("s_add_u32", sPst, sT[2], sT[3]))
    E(salu("s_lshl_b32", sT[3], sQ, 13))
    E(salu("s_add_u32", sT[2], sT[2], sT[3]))
    for d in range(1, 4):
        E(salu("s_xor_b32", sT[3], sQ, d))
        E(salu("s_lshl_b32", sT[3], sT[3], 15))
        E(salu("s_add_u32", sPld[d - 1], sT[2], sT[3]))
    E(salu("s_lshl_b32", sOo, sI, 17))
    E(salu("s_lshl_b32", sT[3], sT[1], 16))
    E(salu("s_add_u32", sOo, sOo, sT[3]))
    E(salu("s_lshr_b32", sT[3], sW, 1))
    E(salu("s_lshl_b32", sT[3], sT[3], 15))
    E(salu("s_add_u32", sOo, sOo, sT[3]))
    E(salu("s_lshl_b32", sT[3], sTJ, 8))
    E(salu("s_add_u32", sOo, sOo, sT[3]))
    E(salu("s_lshl_b32", sT[3], sT[0], 7))
    E(salu("s_add_u32", sOo, sOo, sT[3]))
    E(salu("s_and_b32", sT[3], sW, 1))
    E(salu("s_lshl_b32", sT[3], sT[3], 6))
    E(salu("s_add_u32", sOo, sOo, sT[3]))
    E(salu("s_lshl_b32", sT[2], sI, 4))
    E(salu("s_add_u32", sT[2], sT[2], sJ))
    E(salu("s_lshl_b32", sT[2], sT[2], 7))
    E(salu("s_add_u32", sT[2], sT[2], WS_FLAG))
    E(valu("v_min_u32", vFs, 1, vLane))
    E(valu("v_or_b32", vFs, sW, vFs))
    E(valu("v_lshlrev_b32", vFs, 26, vFs))
    E(valu("v_add_u32", vFs, sT[2], vFs))
    E(valu("v_and_b32", vT[10], 7, vLane))
    E(valu("v_lshlrev_b32", vT[10], 4, vT[10]))
    E(valu("v_bfe_u32", vT[11], vLane, 3, 1))
    E(valu("v_add_u32", vT[10], vT[10], vT[11]))
    E(salu("s_lshl_b32", sT[2], sT[0], 7))
    E(salu("s_lshl_b32", sT[3], sT[1], 3))
    E(salu("s_add_u32", sT[2], sT[2], sT[3]))
    E(salu("s_lshl_b32", sT[3], sTJ, 1))
    E(salu("s_add_u32", sT[2], sT[2], sT[3]))
    E(valu("v_add_u32", vT[10], sT[2], vT[10]))
    E(valu("v_lshlrev_b32", vT[10], 7, vT[10]))
    E(valu("v_add_u32", vFa[0], WS_FLAG, vT[10]))
    E(valu("v_and_b32", vT[10], 15, vLane))
    E(salu("s_lshl_b32", sT[2], sI, 4))
    E(valu("v_add_u32", vT[10], sT[2], vT[10]))
    E(valu("v_lshlrev_b32", vT[10], 7, vT[10]))
    E(valu("v_add_u32", vFa[1], WS_FLAG + 256 * 128, vT[10]))
    E(valu("v_and_b32", vT[10], 3, vLane))
    E(valu("v_max_u32", vT[10], 1, vT[10]))
    E(valu("v_xor_b32", vT[10], sQ, vT[10]))
    E(valu("v_lshlrev_b32", vT[10], 2, vT[10]))
    E(salu("s_add_u32", sT[2], sT[2], sTJ))
    E(valu("v_add_u32", vT[10], sT[2], vT[10]))
    E(valu("v_lshlrev_b32", vT[10], 7, vT[10]))
    E(valu("v_add_u32", vFa[2], WS_FLAG + 512 * 128, vT[10]))
    E(salu("s_mov_b32", sK1, 0))

    sm = [vT[0], vT[1]]
    sq = [vT[2], vT[3]]
    for r_ in sm + sq:
        E(valu("v_mov_b32", r_, 0))
    ONES = 0x3F803F80

    def stats(ks):
        I = []
        for d in range(4):
            I.append(valu("v_dot2c_f32_bf16", sm[d & 1], ONES, XF[ks][d], rmw=True))
            I.append(valu("v_dot2c_f32_bf16", sq[d & 1], XF[ks][d], XF[ks][d], rmw=True))
        return I

    for s in range(8):
        E(wait(vm=xtok[s]))
        for kk in range(4):
            E(ds_read("ds_read_b128", XF[4 * s + kk], PK2[kk], 4096 * s))
        if s:
            for kk in range(4):
                P += stats(4 * (s - 1) + kk)
    for kk in range(4):
        P += stats(28 + kk)
    E(valu("v_add_f32", sm[0], sm[0], sm[1]))
    E(valu("v_add_f32", sq[0], sq[0], sq[1]))
    E(valu("v_mov_b32", sm[1], sm[0]))
    E(valu("v_mov_b32", sq[1], sq[0]))
    E(permswap(sm[0], sm[1]))
    E(permswap(sq[0], sq[1]))
    E(valu("v_add_f32", sm[0], sm[0], sm[1]))
    E(valu("v_add_f32", sq[0], sq[0], sq[1]))
    mean, var, t0, vR, vC = vT[0], vT[2], vT[4], vT[5], vT[6]
    E(valu("v_mul_f32", mean, 1.0 / 512, sm[0]))
    E(valu("v_mul_f32", var, 1.0 / 512, sq[0]))
    E(valu("v_fma_f32", var, "-" + str(mean), mean, var))
    E(valu("v_max_f32", var, 0, var))

    def rbf(x):
        E(valu("v_cvt_pk_bf16_f32", x, x, x))
        E(valu("v_lshlrev_b32", x, 16, x))
    rbf(mean)
    rbf(var)
    E(valu("v_add_f32", var, 1e-5, var))
    rbf(var)
    E(valu("v_sqrt_f32", var, var))
    rbf(var)
    E(valu("v_rcp_f32", vR, var))
    E(valu("v_mul_f32", vC, mean, vR))
    E(valu("v_sub_f32", vC, 0, vC))
    for kk in range(4):
        E(valu("v_add_u32", PK2[kk], 131072, PK[kk]))

    def norm(ks):
        I = []
        for d in range(4):
            a, b = vT[7 + 2 * (d & 1)], vT[8 + 2 * (d & 1)]
            x = XF[ks][d]
            I.append(valu("v_lshlrev_b32", a, 16, x))
            I.append(valu("v_and_b32", b, 0xFFFF0000, x))
            I.append(valu("v_fma_f32", a, a, vR, vC))
            I.append(valu("v_fma_f32", b, b, vR, vC))
            I.append(valu("v_cvt_pk_bf16_f32", x, a, b))
        return I

    P += norm(0)

    sp = Spine()
    reads = []

    def rd_base(bases, n, inner):
        sl = slot_of(n)
        return bases[sl // 2], (sl % 2) * SLOT + inner

    for ks in range(32):
        n = ks // 16
        for eb in range(2):
            k, fr = sp.frag()
            inner = 8192 * ((ks // 4) % 4) + 4096 * eb
            base = PK2[ks % 4] if n == 0 else PK[ks % 4]
            idx = sp.add(n, mfma(ACC1[eb], XF[ks], fr, ACC1[eb] if ks else 0))
            reads.append((idx, idx, n, [ds_read("ds_read_b128", fr, base, inner)], k))
    for sl in range(8):
        n = 2 + sl
        for kk in range(4):
            ks = 4 * sl + kk
            for G in range(7):
                k, fr = sp.frag()
                rr = []
                for r_ in range(2):
                    b, off = rd_base(TR2, n, (16 * kk + 4 * r_) * 224 + 32 * G)
                    rr.append(ds_read("ds_read_b64_tr_b16", fr[2 * r_:2 * r_ + 2], b, off))
                idx = sp.add(n, mfma(ACC2[G], fr, XF[ks], ACC2[G] if ks else 0))
                reads.append((idx, idx, n, rr, k))
    for sl in range(16):
        n = 10 + sl
        for kk in range(4):
            fa, fb = [], []
            first = len(sp.slots)
            for mi in range(2):
                k, fr = sp.frag()
                b, off = rd_base(A3, n, 8192 * mi + 1024 * kk)
                fa.append(fr)
                reads.append((first + 2 * mi, first + 2 * mi + 1, n, [ds_read("ds_read_b128", fr, b, off)], k))
                if mi == 0:
                    for ni in range(2):
                        k, fr = sp.frag()
                        sl_ = slot_of(n)
                        fb.append(fr)
                        reads.append((first + ni, first + 2 + ni, n,
                                      [ds_read("ds_read_b128", fr, B3[sl_ // 2][kk], (sl_ % 2) * SLOT + 16384 + 8192 * ni)], k))
            for mi in range(2):
                for ni in range(2):
                    sp.add(n, mfma(ACC3[mi][ni], fa[mi], fb[ni], ACC3[mi][ni] if (sl or kk) else 0))
    for sl in range(14):
        n = 26 + sl
        for ks in range(8):
            k, fr = sp.frag()
            rr = []
            for r_ in range(2):
                b, off = rd_base(TR4, n, (16 * ks + 8 * r_) * 128)
                rr.append(ds_read("ds_read_b64_tr_b16", fr[2 * r_:2 * r_ + 2], b, off))
            k2, fr2 = sp.frag()
            b, off = rd_base(B4, n, 16384 + 1024 * ks)
            idx = sp.add(n, mfma(ACC3[0][0], fr, fr2, ACC3[0][0]))
            reads.append((idx, idx, n, rr, k))
            reads.append((idx, idx, n, [ds_read("ds_read_b128", fr2, b, off)], k2))

    sf = sp.step_first
    nslots = len(sp.slots)
    early_ok = lambda n: n >= 2
    ring_free_at = {}
    pre_reads = []
    for (first, last, n, rr, k) in reads:
        PD = {0: 3, 1: 3}.get(n, 4 if n < 10 else (5 if n < 26 else 3))
        at = first - PD
        lo = sf[n - 1] if early_ok(n) else sf[n] - 1
        if not early_ok(n):
            if at < sf[n]:
                sp.slots[sf[n]].setdefault("prer", []).extend(rr)
                assert ring_free_at.get(k, -1) < sf[n]
                ring_free_at[k] = last
                continue
        else:
            at = max(at, lo)
        assert ring_free_at.get(k, -1) <= at, (first, at, k, ring_free_at.get(k))
        sp.slots[at]["pr"].extend(rr)
        ring_free_at[k] = last

    def load_gu(n):
        I = []
        sl = slot_of(n) * SLOT
        for cc in range(7):
            if cc % 4 == 0:
                I.append(salu("s_add_u32", "m0", sGUm, sl + 4096 * (cc // 4)))
                if cc == 0 and n > 2:
                    I.append(salu("s_add_u32", sGUo, sGUo, 64 * 3584))
            t = Tok(f"L{n}.{cc}")
            Ltok.setdefault(n, []).append(t)
            I.append(dma(VG[cc], SGU, sGUo, 1024 * (cc % 4), tok=t))
        return I

    def load4(n, part, pat, srd, so, step, first, flags):
        I = [salu("s_add_u32", "m0", sW4096, slot_of(n) * SLOT + 16384 * part)]
        if not first:
            I.append(salu("s_add_u32", so, so, step))
        for k in range(4):
            t = Tok(f"L{n}.{part}.{k}")
            Ltok.setdefault(n, []).append(t)
            I.append(dma(pat[k], srd, so, 1024 * k, flags=flags, tok=t))
        return I

    p3a = lambda n: load4(n, 0, [V16L] * 4, SWK, sABo, 4096, n == 10, "sc1")
    p3b = lambda n: load4(n, 1, VQ, SWS, sWSo, 128, n == 10, "")
    p4a = lambda n: load4(n, 0, VP, SDN, sDNo, 131072, n == 26, "")
    p4b = lambda n: load4(n, 1, [V16L] * 4, SWK, sHo, 8192, n == 26, "sc1")

    def poll_issue(ph):
        return [bload(vF, vFa[ph], SWK, 0, flags="sc1")]

    def poll_check(ph, name):
        nonlocal slow
        I = [vcmp("v_cmp_eq_u64", "vcc", vF, vN),
             raw("s_cmp_eq_u64 vcc, -1", rd=["vcc"], wr=["scc"]),
             branch("s_cbranch_scc0", f"L_slow_{name}"),
             label(f"L_res_{name}")]
        slow += [f"L_slow_{name}:",
                 f"  s_mov_b32 {sCnt}, {opt.spin}",
                 f"L_slowl_{name}:",
                 "  s_sleep 2",
                 f"  buffer_load_dwordx2 {vF}, {vFa[ph]}, {SWK}, 0 offen sc1",
                 "  s_waitcnt vmcnt(0)",
                 f"  v_cmp_eq_u64 vcc, {vF}, {vN}",
                 "  s_nop 1",
                 "  s_cmp_eq_u64 vcc, -1",
                 f"  s_cbranch_scc1 L_res_{name}",
                 f"  s_sub_u32 {sCnt}, {sCnt}, 1",
                 f"  s_cmp_lg_u32 {sCnt}, 0",
                 f"  s_cbranch_scc1 L_slowl_{name}",
                 f"  s_branch L_res_{name}"]
        return I

    def signal(ph):
        return [bstore(vN, vFs, SWK, 0 if ph == 0 else sK1, flags="sc1")]

    dstream = {n: [] for n in range(40)}
    dstream[0] = load_wd(1) + load_gu(2) + load_gu(3) + load_gu(4)
    for n in range(1, 6):
        dstream[n] = load_gu(n + 4)
    dstream[6] = p3b(10)
    dstream[7] = p3b(11) + poll_issue(0)
    dstream[8] = p3a(10) + p3a(11) + p3a(12) + p3b(12)
    for n in range(9, 22):
        dstream[n] = p3a(n + 4) + p3b(n + 4)
    dstream[opt.hpoll] = dstream[opt.hpoll] + poll_issue(1)
    for n in range(22, 36):
        dstream[n] = p4a(n + 4) + p4b(n + 4)
    vZ = vT[11]
    ntok = Tok("nonce")
    dstream[2] = dstream[2] + [valu("v_mov_b32", vN[0], 0)] if False else dstream[2]
    nonce_ld = [valu("v_mov_b32", vZ, 0), bload(vN, vZ, SDBG, 0, flags="sc1", tok=ntok)]

    def ep_ab():
        I = []
        toks = []
        q4 = [V(vT[0].b, 4), V(vT[4].b, 4)]
        tmp = [vT[8], vT[9]]
        c = 0
        for eb in range(2):
            for t in range(2):
                Q = q4[c & 1]
                c += 1
                for p in range(4):
                    I.append(valu("v_accvgpr_read_b32", tmp[0], ACC1[eb][8 * t + 2 * p]))
                    I.append(valu("v_accvgpr_read_b32", tmp[1], ACC1[eb][8 * t + 2 * p + 1]))
                    I.append(valu("v_cvt_pk_bf16_f32", Q[p], tmp[0], tmp[1]))
                    I.append(valu("v_xor_b32", Q[p], sSign, Q[p]))
                I.append(permswap(Q[0], Q[2]))
                I.append(permswap(Q[1], Q[3]))
                tk = Tok(f"ab{eb}{t}")
                toks.append(tk)
                if eb == 1 and t == 0:
                    I.append(salu("s_add_u32", sABst, sABst, 131072))
                I.append(bstore(Q, V16L, SWK, sABst, 1024 * t, flags="sc1", tok=tk))
        return I, toks

    C0 = -2.0 * math.sqrt(2.0 / math.pi) * math.log2(math.e)
    C1 = C0 * 0.044715

    def ep_gelu():
        I = []
        toks = []
        vK1 = vT[11]
        I.append(valu("v_mov_b32", vK1, C1))
        q4 = [V(vT[0].b, 4), V(vPL[5].b, 4)]
        for G in range(7):
            acc = ACC2[G]
            Q = q4[G & 1]
            isA = acc.k == "a"
            for p in range(4):
                hs = []
                for e in range(2):
                    i = 2 * p + e
                    z, w_, gg, uu = vT[4 + e], vT[6 + e], vT[8 + e], vT[10]
                    if isA:
                        I.append(valu("v_accvgpr_read_b32", gg, acc[i]))
                        I.append(valu("v_accvgpr_read_b32", uu, acc[8 + i]))
                        g, u = gg, uu
                    else:
                        g, u = acc[i], acc[8 + i]
                    I.append(valu("v_mul_f32", z, g, g))
                    I.append(valu("v_fmaak_f32", z, z, vK1, C0))
                    I.append(valu("v_mul_f32", z, z, g))
                    I.append(valu("v_exp_f32", z, z))
                    I.append(valu("v_mul_f32", w_, g, u))
                    I.append(valu("v_add_f32", z, 1.0, z))
                    I.append(valu("v_rcp_f32", z, z))
                    hs.append((z, w_))
                for (z, w_) in hs:
                    I.append(valu("v_mul_f32", w_, w_, z))
                I.append(valu("v_cvt_pk_bf16_f32", Q[p], hs[0][1], hs[1][1]))
            tk = Tok(f"h{G}")
            toks.append(tk)
            if G == 4:
                I.append(salu("s_add_u32", sHst, sHst, 4096))
            I.append(bstore(Q, V16L, SWK, sHst, 1024 * (G % 4), flags="sc1", tok=tk))
        return I, toks

    def addr_p3():
        I = [salu("s_and_b32", sT[0], sW, 1), salu("s_lshl_b32", sT[0], sT[0], 12),
             salu("s_lshr_b32", sT[1], sW, 1), salu("s_lshl_b32", sT[1], sT[1], 12)]
        I.append(valu("v_add_u32", A3[0], sT[0], V16L))
        for b in (1, 2):
            I.append(valu("v_add_u32", A3[b], 65536 * b, A3[0]))
        for kk in range(4):
            I.append(valu("v_add_u32", B3[0][kk], sT[1], PK[kk]))
            for b in (1, 2):
                I.append(valu("v_add_u32", B3[b][kk], 65536 * b, B3[0][kk]))
        return I

    def addr_p4():
        a, b, c = vT[4], vT[5], vT[6]
        I = [valu("v_lshrrev_b32", a, 3, vLane), valu("v_lshlrev_b32", a, 10, a),
             valu("v_bfe_u32", b, vLane, 4, 1), valu("v_lshlrev_b32", b, 2, b),
             valu("v_and_b32", c, 7, vLane), valu("v_xor_b32", b, b, c),
             valu("v_lshl_add_u32", VP[0], b, 4, a)]
        for rg in range(1, 4):
            I.append(valu("v_add_u32", VP[rg], 7168 * rg, VP[0]))
        I += [valu("v_lshrrev_b32", a, 5, vLane), valu("v_bfe_u32", b, vLane, 2, 2),
              valu("v_lshl_add_u32", a, a, 2, b), valu("v_lshlrev_b32", a, 7, a),
              valu("v_bfe_u32", b, vLane, 4, 1), valu("v_lshlrev_b32", b, 1, b),
              valu("v_bfe_u32", c, vLane, 1, 1), valu("v_add_u32", b, b, c),
              salu("s_and_b32", sT[0], sW, 1), salu("s_lshl_b32", sT[0], sT[0], 2),
              valu("v_add_u32", b, sT[0], b),
              valu("v_bfe_u32", c, vLane, 3, 1), valu("v_lshlrev_b32", c, 2, c), valu("v_xor_b32", b, b, c),
              valu("v_lshl_add_u32", a, b, 4, a),
              valu("v_and_b32", c, 1, vLane), valu("v_lshl_add_u32", TR4[0], c, 3, a),
              valu("v_add_u32", TR4[1], 65536, TR4[0]), valu("v_add_u32", TR4[2], 131072, TR4[0]),
              salu("s_lshr_b32", sT[1], sW, 1), salu("s_lshl_b32", sT[1], sT[1], 13),
              valu("v_add_u32", B4[0], sT[1], V16L),
              valu("v_add_u32", B4[1], 65536, B4[0]), valu("v_add_u32", B4[2], 131072, B4[0])]
        return I

    def ep_part():
        I = []
        toks = []
        c = 0
        for (mi, ni) in ((1, 0), (0, 1), (1, 1)):
            d = 2 * ni + mi
            I.append(salu("s_xor_b32", sT[0], sQ, d))
            I.append(salu("s_lshl_b32", sT[0], sT[0], 13))
            I.append(salu("s_add_u32", sT[0], sT[0], sPst))
            for h in range(2):
                Q = vPL[c % 4]
                c += 1
                for p in range(4):
                    I.append(valu("v_cvt_pk_bf16_f32", Q[p], ACC3[mi][ni][8 * h + 2 * p], ACC3[mi][ni][8 * h + 2 * p + 1]))
                tk = Tok(f"p{d}{h}")
                toks.append(tk)
                I.append(bstore(Q, V16L, SWK, sT[0], 1024 * h, flags="sc1", tok=tk))
        return I, toks

    vOo = vT[10]

    def resid_load():
        I = [valu("v_and_b32", vOo, 31, vLane), valu("v_lshlrev_b32", vOo, 10, vOo),
             valu("v_lshrrev_b32", vT[9], 5, vLane), valu("v_lshl_add_u32", vOo, vT[9], 3, vOo)]
        for qq in range(4):
            I.append(bload(V(ACC3[1][1].b + 2 * qq, 2), vOo, SX, sOo, 16 * qq))
        return I

    def resid_sum():
        I = []
        for p in range(8):
            x = V(ACC3[1][1].b + p)
            I.append(valu("v_lshlrev_b32", vS[2 * p], 16, x))
            I.append(valu("v_and_b32", vS[2 * p + 1], 0xFFFF0000, x))
        return I

    def part_load():
        I = []
        for d in range(3):
            for h in range(2):
                I.append(bload(vPL[2 * d + h], V16L, SWK, sPld[d], 1024 * h, flags="sc1"))
        return I

    def part_sum():
        I = []
        for d in range(3):
            for h in range(2):
                for p in range(4):
                    x = vPL[2 * d + h][p]
                    a, b = vT[4 + 2 * (p & 1)], vT[5 + 2 * (p & 1)]
                    I.append(valu("v_lshlrev_b32", a, 16, x))
                    I.append(valu("v_and_b32", b, 0xFFFF0000, x))
                    I.append(valu("v_add_f32", vS[8 * h + 2 * p], vS[8 * h + 2 * p], a))
                    I.append(valu("v_add_f32", vS[8 * h + 2 * p + 1], vS[8 * h + 2 * p + 1], b))
        return I

    for ks in range(1, 32):
        st = norm(ks)
        s0 = 2 * (ks - 1)
        sp.slots[s0]["pv"] += st[:10]
        sp.slots[s0 + 1]["pv"] += st[10:]
    ab_I, ab_t = ep_ab()
    sp.place(nonce_ld + ab_I, sf[2] + 1, opt.ab_rate)
    sp.place(addr_p3(), sf[8] + 8, 1.0)
    ge_I, ge_t = ep_gelu()
    gend = sp.place(ge_I, sf[10] + 1, opt.gelu_rate)
    gstep = sp.slots[gend]["step"]
    sp.place(addr_p4(), sf[20], 2.0)
    pa_I, pa_t = ep_part()
    sp.place(pa_I, sf[26] + 2, 4.0)
    sp.place(resid_load(), sf[29] + 1, 4.0)
    sp.place(resid_sum(), sf[32] + 1, 4.0)
    dstream[opt.ppoll] = dstream[opt.ppoll] + poll_issue(2)

    for n in range(40):
        pre = sp.slots[sf[n]]["pre"]
        pre.append(comment(f"---- step {n}"))
        if n == 0:
            pre.append(wait(vm=Ltok[0][-1], lgkm=0))
        elif n == 1:
            pre.append(wait(vm=Ltok[2][-1]))
        elif n + 1 <= 39:
            pre.append(("W", n + 1))
        if n == 4:
            pre.append(wait(vm=ab_t[-1]))
        if n == gstep + 2:
            pre.append(wait(vm=ge_t[-1]))
        if n == 29:
            pre.append(wait(vm=pa_t[-1]))
        pre.append(barrier())
        pre += sp.slots[sf[n]].pop("prer", [])
        if n == 4:
            pre += [vcmp("v_cmp_ne_u32", "vcc", 0, vN[0]),
                    raw("s_cmp_eq_u64 vcc, -1", rd=["vcc"], wr=["scc"]),
                    branch("s_cbranch_scc0", "L_slow_nonce"), label("L_res_nonce")]
            slow += ["L_slow_nonce:", f"  s_mov_b32 {sCnt}, {opt.spin}", "L_slowl_nonce:", "  s_sleep 2",
                     f"  v_mov_b32 {vF[0]}, 0",
                     f"  buffer_load_dwordx2 {vN}, {vF[0]}, {SDBG}, 0 offen sc1", "  s_waitcnt vmcnt(0)",
                     f"  v_cmp_ne_u32 vcc, 0, {vN[0]}", "  s_nop 1", "  s_cmp_eq_u64 vcc, -1",
                     "  s_cbranch_scc1 L_res_nonce", f"  s_sub_u32 {sCnt}, {sCnt}, 1", f"  s_cmp_lg_u32 {sCnt}, 0",
                     "  s_cbranch_scc1 L_slowl_nonce", "  s_branch L_res_nonce"]
            pre += signal(0)
        if n == gstep + 2:
            pre += [salu("s_mov_b32", sK1, 256 * 128)] + signal(1)
        if n == 29:
            pre += [salu("s_mov_b32", sK1, 512 * 128)] + signal(2)
        if n == 8:
            pre += poll_check(0, "ab")
        if n == 22:
            pre += poll_check(1, "h")
        if n == opt.ppoll + 1:
            pre += poll_check(2, "p")
            sp.place(part_load(), sf[n], 6.0, key="pd")
            sp.place(part_sum(), sf[n + 1] + 2, 8.0)
        nsl = (sf[n + 1] if n < 39 else nslots) - sf[n]
        ds_ = dstream[n]
        if ds_:
            rate = max(len(ds_) / max(nsl - 2, 1), opt.dma_rate if n >= 2 else 1.5)
            sp.place(ds_, sf[n], rate, key="pd", end=sf[n] + nsl)
    assert gstep + 2 < opt.hpoll, (gstep, opt.hpoll)

    body = []
    for x in sp.flatten():
        if isinstance(x, tuple):
            body.append(("W", x[1]))
        else:
            body.append(x)
    body2 = []
    for x in body:
        if isinstance(x, tuple):
            for t in Ltok[x[1]]:
                body2.append(wait(vm=t))
        else:
            body2.append(x)

    F = []
    acc = ACC3[0][0]
    for i in range(16):
        F.append(valu("v_add_f32", vS[i], vS[i], acc[i]))
    Q0, Q1 = vPL[0], vPL[1]
    for h, Q in enumerate((Q0, Q1)):
        for p in range(4):
            F.append(valu("v_cvt_pk_bf16_f32", Q[p], vS[8 * h + 2 * p], vS[8 * h + 2 * p + 1]))
        F.append(permswap(Q[0], Q[2]))
        F.append(permswap(Q[1], Q[3]))
    F.append(valu("v_lshl_add_u32", vOo, vT[9], 3, vOo))
    for h, Q in enumerate((Q0, Q1)):
        F.append(bstore(Q, vOo, SOUT, sOo, 32 * h))

    prog = P + body2 + F
    prog = resolve_waits(prog)
    prog = pad_hazards(prog)
    return prog, slow


HEADER = """; Kernarg layout (96 bytes, ptrs only, base s[0:1]): x, seq_re, seq_im, hid_re, hid_im, B_x, w_gate, w_up, w_down, out, debug, ws
; @launch grid=(256,1,1) block=(256,1,1) lds=163840
.amdgcn_target "amdgcn-amd-amdhsa--gfx950"
.text
.globl {name}
.p2align 8
.type {name},@function
{name}:
"""
FOOTER = """L_end:
  s_endpgm
{slow}
L_code_end:
.section .rodata,"a"
.p2align 6
.amdhsa_kernel {name}
  .amdhsa_next_free_vgpr 512
  .amdhsa_next_free_sgpr {nsgpr}
  .amdhsa_accum_offset 256
  .amdhsa_group_segment_fixed_size 0
  .amdhsa_kernarg_size 96
  .amdhsa_user_sgpr_count 2
  .amdhsa_user_sgpr_kernarg_segment_ptr 1
  .amdhsa_system_sgpr_workgroup_id_x 1
.end_amdhsa_kernel
"""


def main():
    ap = argparse.ArgumentParser()
    ap.add_argument("-o", default="parallel_sum__spectral_fnet__geglu_ffn__prompt.s")
    ap.add_argument("--codepf", type=int, default=0)
    ap.add_argument("--spin", type=int, default=20000)
    ap.add_argument("--ab_rate", type=float, default=2.0)
    ap.add_argument("--gelu_rate", type=float, default=5.5)
    ap.add_argument("--dma_rate", type=float, default=0.75)
    ap.add_argument("--hpoll", type=int, default=21)
    ap.add_argument("--ppoll", type=int, default=35)
    opt = ap.parse_args()
    prog, slow = build(opt)
    txt = HEADER.format(name=NAME) + render(prog) + "\n" + FOOTER.format(name=NAME, slow="\n".join(slow), nsgpr=NSGPR)
    open(opt.o, "w").write(txt)
    from collections import Counter
    c = Counter(i.kind for i in prog)
    print(dict(c), "total", len(prog))


if __name__ == "__main__":
    main()
```
